```python
import torch

def _softmax(x, axis=-1):
    return torch.softmax(x, dim=axis)
def _gelu(x):
    return torch.nn.functional.gelu(x, approximate="tanh")
def _silu(x):
    return torch.nn.functional.silu(x)
def _sigmoid(x):
    return torch.sigmoid(x)
def _layernorm(x, axis=-1, eps=1e-5):
    m = x.mean(dim=axis, keepdim=True)
    v = x.var(dim=axis, keepdim=True, unbiased=False)
    return (x - m) / torch.sqrt(v + eps)
def _scatter_add(tgt, idx, src, axis=0):
    return tgt.clone().index_add_(axis, idx, src)
def _segment_sum(src, seg, n):
    out = torch.zeros((n,) + src.shape[1:], dtype=src.dtype)
    return out.index_add_(0, seg, src)
def _pad(x, pw):
    flat = tuple(v for pair in reversed(pw) for v in pair)
    return torch.nn.functional.pad(x, flat)

kernel_name = 'sequential_preLN__ssm_conv_h3__glu_gated_swiglu__prompt'

def setup_inputs():

    _w = (lambda a: (lambda t: t.to(torch.bfloat16) if t.is_floating_point() else t)(torch.as_tensor(a)))
    def _A_setup():
        B, S, D = 1, 2048, 576
        ks = 4
        return {
            "q": _w((lambda *s: torch.randn(*s, dtype=torch.bfloat16) * 0.05)(B, S, D)),
            "k": _w((lambda *s: torch.randn(*s, dtype=torch.bfloat16) * 0.2)(B, S, D)),
            "v": _w((lambda *s: torch.randn(*s, dtype=torch.bfloat16) * 0.2)(B, S, D)),
            "shift_k": _w((lambda *s: torch.randn(*s, dtype=torch.bfloat16) * 0.2)(D, ks) * 0.5),
            "ssm_k": _w((lambda *s: torch.randn(*s, dtype=torch.bfloat16) * 0.4)(D, S) * (1.0 / S ** 0.5)),
            "ssm_D": _w((lambda *s: torch.randn(*s, dtype=torch.bfloat16) * 0.2)(D)),
        }
    _A_in = _A_setup()

    def _B_setup():
        B, S, D, F = 1, 2048, 576, 4608
        return {
            "x": _w((lambda *s: torch.randn(*s, dtype=torch.bfloat16) * 0.05)(B, S, D)),
            "w1": _w((lambda *s: torch.randn(*s, dtype=torch.bfloat16) * 0.2)(D, F) * (2.0 / D) ** 0.5),
            "w3": _w((lambda *s: torch.randn(*s, dtype=torch.bfloat16) * 0.2)(D, F) * (2.0 / D) ** 0.5),
            "w2": _w((lambda *s: torch.randn(*s, dtype=torch.bfloat16) * 0.2)(F, D) * (2.0 / F) ** 0.5),
        }
    _B_in = _B_setup()

    return {
        "A_q": _A_in["q"],
        "A_k": _A_in["k"],
        "A_v": _A_in["v"],
        "A_shift_k": _A_in["shift_k"],
        "A_ssm_k": _A_in["ssm_k"],
        "A_ssm_D": _A_in["ssm_D"],
        "B_x": _B_in["x"],
        "B_w1": _B_in["w1"],
        "B_w3": _B_in["w3"],
        "B_w2": _B_in["w2"],
    }

def reference(A_q, A_k, A_v, A_shift_k, A_ssm_k, A_ssm_D, B_x, B_w1, B_w3, B_w2):
    def _A_ref(q, k, v, shift_k, ssm_k, ssm_D):
        B, S, D = q.shape
        ks = shift_k.shape[-1]
        k_pad = _pad(k, ((0, 0), (ks - 1, 0), (0, 0)))
        k_shift = torch.zeros_like(k)
        for t in range(ks):
            k_shift = k_shift + k_pad[:, t:t + S, :] * shift_k[:, ks - 1 - t][None, None, :]
        kv = k_shift * v
        L = 2 * S
        kv_pad = _pad(kv, ((0, 0), (0, S), (0, 0)))
        kf_pad = _pad(ssm_k, ((0, 0), (0, S)))
        kv_f = (lambda x, axes=(-2,-1): torch.fft.rfft2(x.float(), dim=axes))(kv_pad[:, None, :, :], axes=(1, 2))
        kf_f = (lambda x, axes=(-2,-1): torch.fft.rfft2(x.float(), dim=axes))(kf_pad[:, None, :], axes=(1, 2))
        kf_f = (lambda x, *d: x.permute(*d))(kf_f, 1, 2, 0)
        y_f = kv_f * kf_f[None, :, :, :]
        y = (lambda x, s, axes=(-2,-1): torch.fft.irfft2(x, s=s, dim=axes).to(torch.bfloat16))(y_f, (1, L), axes=(1, 2))[:, 0, :S, :]
        y = y + kv * ssm_D[None, None, :]
        return q * y

    def _B_ref(x, w1, w3, w2):
        gate = torch.einsum("bsd,df->bsf", x, w1)
        up = torch.einsum("bsd,df->bsf", x, w3)
        h = _silu(gate) * up
        out = torch.einsum("bsf,fd->bsd", h, w2)
        return out

    x = A_q
    h = x + _A_ref(_layernorm(x, axis=-1), A_k, A_v, A_shift_k, A_ssm_k, A_ssm_D)
    h2 = h + _B_ref(_layernorm(h, axis=-1), B_w1, B_w3, B_w2)
    return h2
```

```python
import re

def R(kind, lo, n=1):
    return f"{kind}{lo}" if n == 1 else f"{kind}[{lo}:{lo+n-1}]"

_REG = re.compile(r"\b([vas])\[(\d+):(\d+)\]|\b([vas])(\d+)\b|\b(vcc|exec|m0|scc)\b")
def regs_of(text):
    out = []
    for m in _REG.finditer(text):
        if m.group(1): out += [f"{m.group(1)}{i}" for i in range(int(m.group(2)), int(m.group(3)) + 1)]
        elif m.group(4): out.append(f"{m.group(4)}{m.group(5)}")
        else: out.append(m.group(6))
    return out

TRANS = ("v_exp_f32", "v_rcp_f32", "v_rsq_f32", "v_log_f32", "v_sqrt_f32")

class Ins:
    __slots__ = ("text", "op", "kind", "rd", "wr", "needs", "tag", "gap", "lo", "hi", "after", "cost", "passes", "sticky")
    def __init__(self, text, needs=None, tag=None):
        self.text = text.strip()
        self.op = self.text.split()[0]
        self.needs = list(needs) if needs else []
        self.tag = tag
        self.gap = None; self.lo = 0; self.hi = None; self.after = []; self.sticky = None
        self.passes = 0
        self._classify()
    def _classify(self):
        op = self.op; t = self.text
        body = t[len(op):]
        ops = [x.strip() for x in body.split(",")]
        first = regs_of(ops[0]) if ops and ops[0] else []
        rest = regs_of(",".join(ops[1:]))
        rd, wr = [], []
        if op.startswith("v_mfma"):
            k = "mfma"; wr = first; rd = rest; self.passes = 8 if "32x32" in op else 4
        elif op.startswith("ds_read"):
            k = "ldsr"; wr = first; rd = rest
        elif op.startswith("ds_write"):
            k = "ldsw"; rd = first + rest
        elif op.startswith(("buffer_load", "global_load")):
            if " lds" in t: k = "dma"; rd = first + rest + ["m0"]
            else: k = "vld"; wr = first; rd = rest
        elif op.startswith(("buffer_store", "global_store")):
            k = "vst"; rd = first + rest
        elif op.startswith("v_permlane"):
            k = "perm"; wr = first + rest; rd = first + rest
        elif op.startswith("v_cmp"):
            k = "valu"; wr = first; rd = rest
        elif op.startswith(("v_readfirstlane", "v_readlane")):
            k = "valu"; wr = first; rd = rest
        elif op.startswith("v_"):
            k = "trans" if op.startswith(TRANS) else "valu"
            wr = first; rd = rest
            if op.startswith(("v_fmac", "v_dot2c")): rd = rd + first
            if op.startswith("v_cndmask") and len(ops) == 3: rd = rd + ["vcc"]
        elif op == "s_barrier": k = "barrier"
        elif op == "s_waitcnt": k = "wait"
        elif op == "s_nop": k = "nop"
        elif op.startswith(("s_load", "s_memrealtime", "s_memtime", "s_buffer_load")):
            k = "smem"; wr = first; rd = rest
        elif op.startswith(("s_cbranch", "s_branch", "s_endpgm", "s_setpc", "s_sleep", "s_setprio")) or op.endswith(":"):
            k = "ctrl"
        elif op.startswith("s_cmp"):
            k = "salu"; rd = first + rest; wr = ["scc"]
        elif op.startswith("s_"):
            k = "salu"; wr = first; rd = rest
            if op.startswith(("s_cselect", "s_addc", "s_subb")): rd = rd + ["scc"]
            if op.startswith(("s_add", "s_sub", "s_and", "s_or", "s_xor", "s_lsh", "s_andn2", "s_bfe", "s_ashr")): wr = wr + ["scc"]
            if "saveexec" in op: wr = wr + ["exec"]; rd = rd + ["exec"]
        else:
            raise ValueError("unclassified: " + t)
        self.kind = k; self.rd = set(rd); self.wr = set(wr)
        self.cost = {"valu": 1, "trans": 2, "perm": 2, "ldsr": 1, "ldsw": 3, "dma": 2, "vld": 2, "vst": 2, "barrier": 2}.get(k, 0)
    def __repr__(self): return self.text

LGKM = ("ldsr", "ldsw")
VM = ("dma", "vld", "vst")

def states_of(i):
    if i.kind == "nop": return int(i.text.split()[1]) + 1
    if i.kind == "ctrl" and i.op.endswith(":"): return 0
    return 1

def insert_waits(seq, hoist=True):
    out = []
    issued = {"l": [], "v": []}
    done = {"l": 0, "v": 0}
    pend = {}
    idx = {}
    last_mfma_pos = -1
    for ins in seq:
        need = {"l": 0, "v": 0}
        for r in ins.rd | ins.wr:
            if r in pend:
                c, k = pend[r]
                need[c] = max(need[c], k + 1)
        for d in ins.needs:
            c, k = idx[id(d)]
            need[c] = max(need[c], k + 1)
        req = {c: need[c] for c in need if need[c] > done[c]}
        if req:
            pos = len(out)
            if hoist and last_mfma_pos >= 0:
                ok = True
                for c, k in req.items():
                    if issued[c][k - 1][1] > last_mfma_pos: ok = False
                if any(x.kind in ("barrier", "ctrl") for x in out[last_mfma_pos + 1:]): ok = False
                if ok: pos = last_mfma_pos + 1
            parts = {}
            for c, k in req.items():
                n_at = sum(1 for (_, p) in issued[c] if p < pos)
                n = n_at - k
                mx = 15 if c == "l" else 63
                n = min(n, mx)
                parts[c] = n
                done[c] = max(done[c], n_at - n)
            if pos < len(out) and out[pos].kind == "wait" and out[pos].tag == "auto":
                old = dict(re.findall(r"(vmcnt|lgkmcnt)\((\d+)\)", out[pos].text))
                for c, n in parts.items():
                    nm = "lgkmcnt" if c == "l" else "vmcnt"
                    old[nm] = str(min(n, int(old.get(nm, 99))))
                out[pos] = Ins("s_waitcnt " + " ".join(f"{k}({v})" for k, v in sorted(old.items(), reverse=True)), tag="auto")
            else:
                w = Ins("s_waitcnt " + " ".join(f"{'vmcnt' if c == 'v' else 'lgkmcnt'}({n})" for c, n in sorted(parts.items(), reverse=True)), tag="auto")
                out.insert(pos, w)
                for c in issued:
                    issued[c] = [(o, p + 1 if p >= pos else p) for (o, p) in issued[c]]
            for r in [r for r, (c, k) in pend.items() if k < done[c]]: del pend[r]
        if ins.kind == "wait":
            for nm, n in re.findall(r"(vmcnt|lgkmcnt)\((\d+)\)", ins.text):
                c = "l" if nm == "lgkmcnt" else "v"
                done[c] = max(done[c], len(issued[c]) - int(n))
            for r in [r for r, (c, k) in pend.items() if k < done[c]]: del pend[r]
        out.append(ins)
        p = len(out) - 1
        if ins.kind in LGKM or ins.kind in VM:
            c = "l" if ins.kind in LGKM else "v"
            idx[id(ins)] = (c, len(issued[c]))
            for r in ins.wr: pend[r] = (c, len(issued[c]))
            issued[c].append((ins, p))
        if ins.kind == "mfma": last_mfma_pos = p
    return out

def pad_hazards(seq, verbose=False):
    out = []; added = 0
    VEC_W = ("valu", "trans", "perm")
    for ins in seq:
        need = 0
        dist = 0
        for prev in reversed(out):
            if dist >= 20: break
            req = 0
            pw = prev.wr
            if prev.kind in VEC_W:
                if ins.kind == "mfma" and pw & ins.rd: req = 2
                if ins.kind == "perm" and pw & ins.rd: req = max(req, 2)
                if prev.kind == "trans" and ins.kind in ("valu", "perm", "ldsw", "vst") and pw & ins.rd: req = max(req, 1)
                if ins.op.startswith(("v_readfirstlane", "v_readlane")) and pw & ins.rd: req = max(req, 1)
                sg = {r for r in pw if r[0] == "s" or r == "vcc"}
                if sg:
                    if ins.kind in VM and sg & ins.rd: req = max(req, 5)
                    if ins.kind in VEC_W and sg & ins.rd: req = max(req, 2)
                    if ins.kind in ("salu", "ctrl") and (sg & ins.rd or (ins.op.startswith("s_cbranch_vcc") and "vcc" in sg)): req = max(req, 4)
                if "dpp" in ins.text or "row_" in ins.text or "quad_perm" in ins.text:
                    if pw & ins.rd: req = max(req, 2)
                if "exec" in pw and ins.kind == "mfma": req = max(req, 4)
            if prev.kind == "mfma":
                big = prev.passes == 8
                ov_r = pw & ins.rd; ov_w = pw & ins.wr
                if ins.kind == "mfma":
                    iops = [x.strip() for x in ins.text[len(ins.op):].split(",")]
                    pops = [x.strip() for x in prev.text[len(prev.op):].split(",")]
                    ab = set(regs_of(iops[1] + "," + iops[2])); cc = set(regs_of(iops[3]))
                    if pw & ab: req = max(req, 12 if big else 8)
                    if pw & cc and not (iops[3] == pops[0] and prev.passes == ins.passes): req = max(req, 10 if big else 6)
                    if ov_w and not (pw & cc): req = max(req, 12 if big else 8)
                elif ins.kind in VEC_W or ins.kind in LGKM or ins.kind in VM:
                    if ov_r or ov_w: req = max(req, 12 if big else 8)
                    pops = [x.strip() for x in prev.text[len(prev.op):].split(",")]
                    if ins.kind in VEC_W and set(regs_of(pops[3])) & ins.wr: req = max(req, 7 if big else 3)
            if prev.kind == "vst" and ("x4" in prev.op or "x3" in prev.op) and ins.kind in VEC_W + ("ldsr", "vld", "mfma"):
                data = set(regs_of(prev.text[len(prev.op):].split(",")[1 if prev.op.startswith("global") else 0]))
                if data & ins.wr: req = max(req, 2)
            if prev.kind == "salu" and "m0" in pw and ins.kind == "dma": req = max(req, 1)
            if req > dist: need = max(need, req - dist)
            dist += states_of(prev)
        if need:
            added += need
            if verbose: print("  pad", need, "before", ins.text)
            out.append(Ins(f"s_nop {need-1}"))
        out.append(ins)
    return out, added

def lines(text):
    return [Ins(l) for l in (x.split(";")[0].strip() for x in text.strip().splitlines()) if l]

def finish(seq, verbose=False, hoist=True):
    seq = insert_waits(seq, hoist)
    seq, n = pad_hazards(seq, verbose)
    return seq, n

def text_of(seq):
    return "\n".join(("" if i.op.endswith(":") else "  ") + i.text for i in seq) + "\n"

class Sched:
    def __init__(self):
        self.back = []; self.items = []; self.overlog = []
    def mfma(self, text):
        i = Ins(text); self.back.append(i); return len(self.back) - 1
    def add(self, ins, lo=0, hi=None, after=(), sticky=None):
        if isinstance(ins, str): ins = Ins(ins)
        ins.lo = lo; ins.hi = hi; ins.after = list(after); ins.sticky = sticky or []
        self.items.append(ins); return ins
    def run(self, cap32=5, report=False):
        n = len(self.back)
        order = {"salu": 0, "wait": 0, "nop": 0, "ldsr": 1, "dma": 2, "vld": 2, "vst": 2, "ldsw": 2, "valu": 3, "trans": 3, "perm": 3, "barrier": 4}
        pending = sorted(self.items, key=lambda x: x.lo)
        active = []; pi = 0; out = []; over = 0
        INF = 1 << 30
        for g in range(n):
            out.append(self.back[g])
            while pi < len(pending) and pending[pi].lo <= g:
                active.append(pending[pi]); pi += 1
            big = self.back[g].passes == 8
            cap = cap32 if big else 2
            used = 0; nsc = 0; chosen = []; nmem = 0; nlds = 0
            progress = True
            while progress:
                progress = False
                ready = [x for x in active if all(d.gap is not None and d.gap + m <= g for d, m in x.after)]
                ready.sort(key=lambda x: (x.hi if x.hi is not None else INF))
                for x in ready:
                    forced = x.hi is not None and x.hi <= g
                    c = x.cost; sc = len(x.sticky) + (1 if c == 0 else 0)
                    fits = used + c <= cap
                    if not big:
                        if c == 0: fits = nsc + used < 3 and nsc < 2
                        if x.kind in ("dma", "vld", "vst", "barrier", "ldsw") and used > 0: fits = False
                        if x.kind == "ldsw": fits = used == 0
                        if x.kind == "ldsr" and nlds >= 1: fits = False
                        if sc and c and nsc + sc > 1: fits = fits and nsc + sc + used + c <= 3
                    else:
                        if c == 0: fits = nsc < 2
                        if x.kind in ("dma", "vld", "vst") and nmem >= 1: fits = False
                        if x.kind == "ldsr" and nlds >= 2: fits = False
                        if x.kind == "barrier": fits = used <= 2
                        if any(y.kind == "barrier" for y in chosen) and c: fits = used + c <= 4
                    if fits or forced:
                        if not fits: over += max(c, 1); self.overlog.append((g, x.kind))
                        x.gap = g; chosen.append(x); active.remove(x)
                        used += c; nsc += sc
                        nmem += x.kind in ("dma", "vld", "vst"); nlds += x.kind == "ldsr"
                        progress = True
                        break
            chosen_sorted = []
            for x in sorted(chosen, key=lambda x: order[x.kind]):
                chosen_sorted.append(x)
            fixed = []
            rem = chosen_sorted[:]
            while rem:
                for x in rem:
                    if all(d not in rem for d, m in x.after):
                        fixed.append(x); rem.remove(x); break
                else: raise RuntimeError("cycle in gap")
            pre = [s for x in fixed for s in x.sticky]
            out += pre + fixed
        left = active + pending[pi:]
        if report: print(f"sched: {n} mfma, {len(self.items)} fillers, forced-over cost {over}, left {len(left)}")
        rem = sorted(left, key=lambda x: (x.lo, x.hi if x.hi is not None else INF))
        while rem:
            for x in rem:
                if all(d.gap is not None for d, m in x.after):
                    x.gap = n; out += x.sticky + [x]; rem.remove(x); break
            else: raise RuntimeError("cycle in leftovers")
        return out
```

```python
S, D, F = 2048, 576, 4608
KA = dict(q=0, k=8, v=16, sh=24, sk=32, sd=40, bx=48, w1=56, w3=64, w2=72, out=80, dbg=88, ws=96)
XR = 0x000000
QT = 0x240000
HT = 0x480000
ST = 0x6C0000
CS = 0x6C4000
FL = 0x6E0000
PT = 0x700000
PT_BYTES = 32 * 3 * 64 * 3072
STAMP_OFF = 200 << 20
SRD3 = "0x20000"

def srd(r, ptr, size, off=0):
    t = ""
    if off == 0:
        t += f"s_mov_b32 s{r}, s{ptr}\ns_mov_b32 s{r+1}, s{ptr+1}\n"
    else:
        t += f"s_add_u32 s{r}, s{ptr}, {off}\ns_addc_u32 s{r+1}, s{ptr+1}, 0\n"
    t += f"s_mov_b32 s{r+2}, {size}\ns_mov_b32 s{r+3}, {SRD3}\n"
    return t

def kbegin(name):
    return f".globl {name}\n.p2align 8\n.type {name},@function\n{name}:\n"

def kdesc(name, vgpr, accum, sgpr=102):
    return f""".section .rodata,"a"
.p2align 6
.amdhsa_kernel {name}
  .amdhsa_next_free_vgpr {vgpr}
  .amdhsa_next_free_sgpr {sgpr}
  .amdhsa_accum_offset {accum}
  .amdhsa_group_segment_fixed_size 0
  .amdhsa_kernarg_size 104
  .amdhsa_user_sgpr_count 2
  .amdhsa_user_sgpr_kernarg_segment_ptr 1
  .amdhsa_system_sgpr_workgroup_id_x 1
.end_amdhsa_kernel
.text
"""

def stamp(slot):
    return f"s_memrealtime s[{90+2*slot}:{91+2*slot}]\n"
def stamp_store(kidx, vt, tag):
    a, c = vt, vt + 2
    t = f"s_load_dwordx2 s[84:85], s[0:1], 96\ns_waitcnt lgkmcnt(0)\n"
    t += f"v_cmp_eq_u32 vcc, 0, v0\ns_nop 3\ns_and_saveexec_b64 s[88:89], vcc\ns_cbranch_execz Lst_{tag}\n"
    t += f"s_lshl_b32 s87, s2, 5\ns_add_u32 s87, s87, {STAMP_OFF + kidx*1024*32}\nv_mov_b32 v{a}, s87\n"
    for i in range(4):
        t += f"v_mov_b32 v{c}, s{90+2*i}\nv_mov_b32 v{c+1}, s{91+2*i}\nglobal_store_dwordx2 v{a}, v[{c}:{c+1}], s[84:85] offset:{8*i}\ns_nop 1\n"
    t += f"Lst_{tag}:\ns_mov_b64 exec, s[88:89]\n"
    return t
```

```python
from cfg import *
from asmcore import *

NT, NS, NP = 288, 64, 64
K0_GRID = NT + NS + NP

def gen_k0(st=False):
    n = "k0_kernel"
    t = kbegin(n)
    if st: t += stamp(0)
    t += f"""
s_cmp_ge_u32 s2, {NT}
s_cbranch_scc1 L0_other
s_load_dwordx4 s[4:7], s[0:1], {KA['q']}
s_load_dwordx4 s[8:11], s[0:1], {KA['v']}
s_load_dwordx2 s[12:13], s[0:1], {KA['ws']}
s_and_b32 s3, s2, 31
s_lshr_b32 s14, s2, 5
s_mul_i32 s15, s3, {64*1152}
s_lshl_b32 s16, s14, 7
s_add_u32 s15, s15, s16
v_and_b32 v1, 31, v0
v_lshrrev_b32 v2, 5, v0
v_mul_u32_u24 v3, {8*1152}, v2
v_lshl_add_u32 v3, v1, 2, v3
v_add_u32 v3, s15, v3
v_subrev_u32 v4, 3456, v3
v_add_u32 v5, 4608, v3
s_lshl_b32 s17, s14, 9
v_lshl_add_u32 v6, v1, 4, s17
s_waitcnt lgkmcnt(0)
"""
    t += srd(20, 6, S*D*2) + srd(24, 8, S*D*2) + srd(28, 4, S*D*2) + srd(32, 10, D*8)
    body = ""
    KR, VR, QR, WR = 16, 27, 35, 44
    for j in range(3): body += f"buffer_load_dword v{KR+j}, v4, s[20:23], 0 offen offset:{1152*j} nt\n"
    def rows(base, s):
        x = ""
        for j in range(8):
            x += f"buffer_load_dword v{base+j}, v{3 if j < 4 else 5}, s[{s}:{s+3}], 0 offen offset:{1152*(j%4)} nt\n"
        return x
    body += rows(KR + 3, 20)
    body += f"buffer_load_dwordx4 v[{WR}:{WR+3}], v6, s[32:35], 0 offen\n"
    body += rows(VR, 24) + rows(QR, 28)
    body += srd(36, 12, D*S*2, XR) + srd(40, 12, D*S*2, QT)
    body += f"""
s_lshl_b32 s18, s14, 18
s_lshl_b32 s19, s3, 7
v_lshlrev_b32 v7, 13, v1
v_lshl_add_u32 v8, v2, 4, s19
v_add_u32 v7, s18, v7
v_add_u32 v9, v7, v8
v_sub_u32 v8, 4080, v8
v_add_u32 v8, v7, v8
s_movk_i32 s44, 4096
s_mov_b32 s45, 0x05040100
s_mov_b32 s46, 0x07060302
"""
    TW = 48
    for c in range(2):
        for h in range(2):
            body += f"v_lshlrev_b32 v{TW+4*c+2*h}, 16, v{WR+2*c+h}\nv_and_b32 v{TW+4*c+2*h+1}, 0xffff0000, v{WR+2*c+h}\n"
    KL, KH = 56, 67
    for j in range(11):
        body += f"v_lshlrev_b32 v{KL+j}, 16, v{KR+j}\nv_and_b32 v{KH+j}, 0xffff0000, v{KR+j}\n"
    O = 80
    for c, base in ((0, KL), (1, KH)):
        for j in range(8):
            body += f"v_mul_f32 v{O+8*c+j}, v{TW+4*c+3}, v{base+j}\n"
        for tap in (2, 1, 0):
            for j in range(8):
                body += f"v_fmac_f32 v{O+8*c+j}, v{TW+4*c+tap}, v{base+j+3-tap}\n"
    for j in range(8):
        body += f"v_lshlrev_b32 v{KL+j}, 16, v{VR+j}\nv_and_b32 v{KH+j}, 0xffff0000, v{VR+j}\n"
    for j in range(8):
        body += f"v_mul_f32 v{O+j}, v{O+j}, v{KL+j}\nv_mul_f32 v{O+8+j}, v{O+8+j}, v{KH+j}\n"
    P = 96
    for c in range(2):
        for d in range(4):
            body += f"v_cvt_pk_bf16_f32 v{P+4*c+d}, v{O+8*c+7-2*d}, v{O+8*c+6-2*d}\n"
    body += f"buffer_store_dwordx4 v[{P}:{P+3}], v8, s[36:39], 0 offen\nbuffer_store_dwordx4 v[{P+4}:{P+7}], v8, s[36:39], s44 offen\n"
    for c in range(2):
        for d in range(4):
            body += f"v_perm_b32 v{P+8+4*c+d}, v{QR+2*d+1}, v{QR+2*d}, s{45+c}\n"
    body += f"buffer_store_dwordx4 v[{P+8}:{P+11}], v9, s[40:43], 0 offen\nbuffer_store_dwordx4 v[{P+12}:{P+15}], v9, s[40:43], s44 offen\n"
    if st: body = body.replace("s_mov_b32 s46, 0x07060302\n", "s_mov_b32 s46, 0x07060302\ns_waitcnt vmcnt(0)\n" + stamp(1))
    seq, _ = finish(lines(body))
    t += text_of(seq)
    if st: t += stamp(2) + "s_waitcnt vmcnt(0)\n" + stamp(3) + stamp_store(0, 4, "k0a")
    t += "s_endpgm\n"
    t += f"""L0_other:
s_cmp_ge_u32 s2, {NT+NS}
s_cbranch_scc1 L0_misc
s_load_dwordx2 s[4:5], s[0:1], {KA['q']}
s_load_dwordx2 s[12:13], s[0:1], {KA['ws']}
s_sub_u32 s3, s2, {NT}
s_lshl_b32 s3, s3, 5
v_lshrrev_b32 v1, 3, v0
v_add_u32 v1, s3, v1
v_and_b32 v2, 7, v0
v_mul_u32_u24 v3, 1152, v1
v_lshl_add_u32 v3, v2, 4, v3
s_waitcnt lgkmcnt(0)
"""
    t += srd(20, 4, S*D*2)
    body = ""
    for j in range(9): body += f"buffer_load_dwordx4 v[{8+4*j}:{11+4*j}], v3, s[20:23], 0 offen offset:{128*j} nt\n"
    body += srd(24, 12, 16384, ST)
    body += "s_mov_b32 s14, 0x3f803f80\nv_mov_b32 v4, 0\nv_mov_b32 v5, 0\nv_mov_b32 v6, 0\nv_mov_b32 v7, 0\nv_lshlrev_b32 v1, 2, v1\ns_movk_i32 s15, 8192\n"
    for j in range(36):
        body += f"v_dot2_f32_bf16 v{4+(j&1)}, v{8+j}, s14, v{4+(j&1)}\nv_dot2_f32_bf16 v{6+(j&1)}, v{8+j}, v{8+j}, v{6+(j&1)}\n"
    body += "s_nop 2\nv_add_f32 v4, v4, v5\nv_add_f32 v6, v6, v7\n"
    for dpp in ("quad_perm:[1,0,3,2]", "quad_perm:[2,3,0,1]", "row_half_mirror"):
        body += f"v_add_f32_dpp v4, v4, v4 {dpp} row_mask:0xf bank_mask:0xf\nv_add_f32_dpp v6, v6, v6 {dpp} row_mask:0xf bank_mask:0xf\n"
    body += """v_mul_f32 v4, 0x3ae38e39, v4
v_mul_f32 v6, 0x3ae38e39, v6
v_fma_f32 v6, -v4, v4, v6
v_max_f32 v6, 0, v6
v_add_f32 v6, 0x3727c5ac, v6
v_rsq_f32 v6, v6
v_cmp_eq_u32 vcc, 0, v2
v_mul_f32 v4, v4, v6
v_sub_f32 v4, 0, v4
v_cndmask_b32 v1, 2.0, v1, vcc
buffer_store_dword v6, v1, s[24:27], 0 offen
buffer_store_dword v4, v1, s[24:27], s15 offen
"""
    seq, _ = finish(lines(body))
    t += text_of(seq)
    if st: t += "s_waitcnt vmcnt(0)\n" + stamp(1) + stamp(2) + stamp(3) + stamp_store(0, 4, "k0b")
    t += "s_endpgm\n"
    t += f"""L0_misc:
s_cmp_ge_u32 s2, {K0_GRID}
s_cbranch_scc1 L0_end
s_load_dwordx2 s[4:5], s[0:1], {KA['sk']}
s_load_dwordx2 s[12:13], s[0:1], {KA['ws']}
s_getpc_b64 s[16:17]
L0_pc:
s_add_u32 s16, s16, k1_kernel-L0_pc
s_addc_u32 s17, s17, 0
s_sub_u32 s3, s2, {NT+NS}
s_and_b32 s14, s3, 7
s_lshr_b32 s15, s3, 3
v_lshlrev_b32 v1, 4, v0
s_waitcnt lgkmcnt(0)
"""
    t += srd(20, 4, S*D*2) + srd(24, 12, 12288, FL)
    t += "s_mul_i32 s18, s15, 9\n"
    for j in range(9):
        t += f"s_add_u32 s19, s18, {j}\ns_lshr_b32 s28, s19, 2\ns_lshl_b32 s28, s28, 3\ns_add_u32 s28, s28, s14\ns_lshl_b32 s28, s28, 2\ns_and_b32 s19, s19, 3\ns_add_u32 s28, s28, s19\ns_lshl_b32 s28, s28, 12\n"
        t += f"buffer_load_dwordx4 v[{8+4*j}:{11+4*j}], v1, s[20:23], s28 offen nt\n"
    t += f"""v_mov_b32 v2, 0
v_mov_b32 v3, 0
v_mov_b32 v4, 0
v_mov_b32 v5, 0
s_lshl_b32 s19, s3, 12
buffer_store_dwordx4 v[2:5], v1, s[24:27], s19 offen
s_cmp_ge_u32 s15, 2
s_cbranch_scc1 L0_nocode
s_lshl_b32 s19, s15, 12
v_add_u32 v6, s19, v1
global_load_dwordx4 v[44:47], v6, s[16:17] nt
L0_nocode:
"""
    if st: t += "s_waitcnt vmcnt(0)\n" + stamp(1) + stamp(2) + stamp(3) + stamp_store(0, 4, "k0c")
    t += "L0_end:\ns_endpgm\n"
    t += kdesc(n, 112, 112)
    return t, f"; @launch kernel={n} grid=({K0_GRID},1,1) block=(256,1,1) lds=0\n"
```

```python
from cfg import *
from asmcore import *

NC, NX = 144, 144
K1_GRID = NC + NX
HP0, HP1, XRL, WSTRIDE = 0, 4160, 8320, 12928
K1_LDS = 4 * WSTRIDE

def gen_k1(st=False, k3_bytes=65536):
    n = "k1_kernel"
    t = kbegin(n)
    if st: t += stamp(0)
    t += f"""
s_cmp_ge_u32 s2, {NC}
s_cbranch_scc1 L1_other
s_load_dwordx4 s[4:7], s[0:1], {KA['sk']}
s_load_dwordx2 s[8:9], s[0:1], {KA['ws']}
v_lshrrev_b32 v1, 6, v0
v_and_b32 v2, 63, v0
v_readfirstlane_b32 s3, v1
v_lshlrev_b32 v3, 4, v2
v_and_b32 v4, 15, v2
v_lshrrev_b32 v5, 4, v2
s_lshl_b32 s10, s2, 2
s_add_u32 s10, s10, s3
s_mul_i32 s11, s3, {WSTRIDE}
s_lshl_b32 s12, s10, 12
s_lshr_b32 s13, s10, 1
s_lshl_b32 s13, s13, 2
s_waitcnt lgkmcnt(0)
s_load_dword s14, s[6:7], s13
"""
    t += srd(16, 4, S*D*2) + srd(20, 8, D*S*2, XR)
    pre = f"s_add_u32 m0, s11, {XRL}\n"
    A0, E0 = 8, 24
    for j in range(4):
        pre += f"buffer_load_dwordx4 v[{A0+4*j}:{A0+4*j+3}], v3, s[16:19], s12 offen offset:{1024*j} nt\n"
        pre += f"buffer_load_dword v{E0+j}, v3, s[16:19], s12 offen offset:{1024*j+16} nt\n"
    for j in range(4):
        pre += f"buffer_load_dwordx4 v3, s[20:23], s12 offen offset:{1024*j} lds\n"
    pre += srd(24, 8, D*S*2, QT) + srd(28, 8, 16384, ST) + srd(32, 8, D*S*2, HT)
    ACC, HF, XF = 32, 64, 96
    QV, AV, BV, KV = 128, 144, 176, 208
    vQ, vS, vH, vX, vK, vW, vZ = 224, 225, 226, 230, 231, 232, 233
    pre += f"""
v_lshlrev_b32 v{vQ}, 5, v4
v_lshl_add_u32 v{vQ}, v5, 3, v{vQ}
v_lshlrev_b32 v{vS}, 1, v{vQ}
s_movk_i32 s36, 4096
s_movk_i32 s37, 8192
s_movk_i32 s38, 12288
"""
    late = ""
    for nn in range(8):
        late += f"buffer_load_dwordx2 v[{QV+2*nn}:{QV+2*nn+1}], v{vQ}, s[24:27], s12 offen offset:{512*nn}\n"
        late += f"buffer_load_dwordx4 v[{AV+4*nn}:{AV+4*nn+3}], v{vS}, s[28:31], {'0' if nn < 4 else 's36'} offen offset:{1024*(nn%4)}\n"
        late += f"buffer_load_dwordx4 v[{BV+4*nn}:{BV+4*nn+3}], v{vS}, s[28:31], {'s37' if nn < 4 else 's38'} offen offset:{1024*(nn%4)}\n"
    pre += late
    pre += f"""
v_add_u32 v{vW}, s11, v3
v_mov_b32 v28, 0
v_mov_b32 v29, 0
v_lshlrev_b32 v6, 3, v2
v_add_u32 v6, s11, v6
ds_write_b64 v6, v[28:29] offset:{XRL+4096}
v_and_b32 v7, 1, v4
v_add_u32 v30, 1, v4
v_and_b32 v30, 30, v30
v_lshlrev_b32 v30, 1, v30
v_mul_u32_u24 v7, {HP1-HP0}, v7
v_sub_u32 v30, v30, v7
v_lshl_add_u32 v30, v5, 4, v30
v_add_u32 v30, {HP1}, v30
v_add_u32 v{vH}, s11, v30
v_add_u32 v{vH+1}, 1024, v{vH}
v_add_u32 v{vH+2}, 2048, v{vH}
v_add_u32 v{vH+3}, 3072, v{vH}
v_lshlrev_b32 v30, 5, v4
v_sub_u32 v30, {XRL+480}, v30
v_lshl_add_u32 v{vX}, v5, 4, v30
v_add_u32 v{vX}, s11, v{vX}
v_sub_u32 v{vK}, {XRL+504}, v{vQ}
v_add_u32 v{vK}, s11, v{vK}
v_lshlrev_b32 v6, 2, v2
v_add_u32 v6, s11, v6
v_cmp_eq_u32 s[40:41], 7, v2
v_cmp_gt_u32 s[42:43], 8, v2
"""
    for j in range(4):
        a = A0 + 4 * j
        pre += f"ds_write_b128 v{vW}, v[{a}:{a+3}] offset:{HP0+32+1024*j}\n"
        if j == 0: pre += f"v_readfirstlane_b32 s39, v{a}\n"
        for k in range(4):
            hi = f"v{a+k+1}" if k < 3 else f"v{E0+j}"
            pre += f"v_alignbit_b32 v{236+4*(j&1)+k}, {hi}, v{a+k}, 16\n"
        pre += f"ds_write_b128 v{vW}, v[{236+4*(j&1)}:{239+4*(j&1)}] offset:{HP1+32+1024*j}\n"
        if j == 0:
            pre += f"""s_lshl_b32 s39, s39, 16
v_mov_b32 v31, s39
v_cndmask_b32 v31, 0, v31, s[40:41]
s_mov_b64 s[44:45], exec
s_mov_b64 exec, s[42:43]
ds_write_b32 v6, v28 offset:{HP0}
ds_write_b32 v6, v31 offset:{HP1}
s_mov_b64 exec, s[44:45]
"""
    pre_ins = lines(pre)
    dmas = [i for i in pre_ins if i.kind == "dma"]
    sc = Sched()
    def rdH(r, sg):
        o = 128 * (sg & 1) + 16 * r
        return [f"ds_read2_b32 v[{HF+4*sg+2*h}:{HF+4*sg+2*h+1}], v{vH+(sg>>1)} offset0:{o+2*h} offset1:{o+2*h+1}" for h in range(2)]
    def rdX(r, m):
        return f"ds_read_b128 v[{XF+4*m}:{XF+4*m+3}], v{vX} offset:{3584-512*m+64*r}"
    first = []
    first += [Ins(x) for x in rdH(0, 0)]
    x0 = [Ins(rdX(0, m), needs=dmas) for m in range(7, -1, -1)]
    first += x0
    for sg in range(1, 8): first += [Ins(x) for x in rdH(0, sg)]
    lastuse = {}
    pos = {}
    seen = set()
    for r in range(8):
        for sg in range(8):
            for m in range(7 - sg, -1, -1):
                nn = sg + m
                c = "0" if nn not in seen else f"v[{ACC+4*nn}:{ACC+4*nn+3}]"
                seen.add(nn)
                g = sc.mfma(f"v_mfma_f32_16x16x32_bf16 v[{ACC+4*nn}:{ACC+4*nn+3}], v[{HF+4*sg}:{HF+4*sg+3}], v[{XF+4*m}:{XF+4*m+3}], {c}")
                pos[(r, sg, m)] = g
    for r in range(7):
        for sg in range(8):
            lo = pos[(r, sg, 0)]; hi = pos[(r + 1, sg, 7 - sg)] - 8
            for x in rdH(r + 1, sg): sc.add(x, lo=lo, hi=max(lo, hi))
        for m in range(8):
            lo = pos[(r, 7 - m, m)]; hi = pos[(r + 1, 0, m)] - 6
            sc.add(rdX(r + 1, m), lo=lo, hi=max(lo, hi))
    prev = None
    kvr = []
    for nn in range(8):
        kvr.append(sc.add(f"ds_read_b64 v[{KV+2*nn}:{KV+2*nn+1}], v{vK} offset:{512*(7-nn)}", lo=40 + nn))
    T = 236
    sh_last = {}
    for nn in range(8):
        blk = []
        for r in range(4):
            q = QV + 2 * nn + (r >> 1); kv = KV + 2 * nn + 1 - (r >> 1)
            qf, kf = T + 2 * (r & 1), T + 2 * (r & 1) + 1
            blk.append(f"v_lshlrev_b32 v{qf}, 16, v{q}" if r % 2 == 0 else f"v_and_b32 v{qf}, 0xffff0000, v{q}")
            blk.append(f"v_and_b32 v{kf}, 0xffff0000, v{kv}" if r % 2 == 0 else f"v_lshlrev_b32 v{kf}, 16, v{kv}")
            blk.append(f"v_fma_f32 v{AV+4*nn+r}, v{AV+4*nn+r}, v{qf}, v{BV+4*nn+r}")
            blk.append(f"v_mul_f32 v{kf}, s14, v{kf}")
            blk.append(f"v_fma_f32 v{BV+4*nn+r}, v{AV+4*nn+r}, v{kf}, v{qf}")
        for x in blk:
            prev = sc.add(x, lo=72, after=([(prev, 0)] if prev else []) + [(kvr[nn], 2)])
        sh_last[nn] = prev
    for nn in range(8):
        g = pos[(7, nn, 0)] + 4
        p = sh_last[7]
        for r in range(4):
            p = sc.add(f"v_fma_f32 v{BV+4*nn+r}, v{AV+4*nn+r}, v{ACC+4*nn+r}, v{BV+4*nn+r}", lo=g, after=[(p, 0)])
        for h in range(2):
            p = sc.add(f"v_cvt_pk_bf16_f32 v{QV+2*nn+h}, v{BV+4*nn+2*h}, v{BV+4*nn+2*h+1}", lo=g, after=[(p, 0)])
        p = sc.add(f"buffer_store_dwordx2 v[{QV+2*nn}:{QV+2*nn+1}], v{vQ}, s[32:35], s12 offen offset:{512*nn}", lo=g, after=[(p, 0)])
        sh_last[7] = p
    main = sc.run(report=True)
    fix = lines("s_waitcnt lgkmcnt(0)\ns_and_b32 s15, s10, 1\ns_lshl_b32 s15, s15, 4\ns_lshr_b32 s14, s14, s15\ns_lshl_b32 s14, s14, 16")
    k = next(i for i, x in enumerate(pre_ins) if x.kind == "ldsw")
    seq = pre_ins[:k] + fix + pre_ins[k:] + first + (lines(stamp(1) + "s_waitcnt lgkmcnt(0)") if st else []) + main
    seq, pads = finish(seq)
    print("k1 conv: instrs", len(seq), "pads", pads)
    t += text_of(seq)
    if st: t += stamp(2) + "s_waitcnt vmcnt(0)\n" + stamp(3) + stamp_store(1, 4, "k1a")
    t += "s_endpgm\n"
    t += f"""L1_other:
s_cmp_ge_u32 s2, {K1_GRID}
s_cbranch_scc1 L1_end
s_load_dwordx4 s[4:7], s[0:1], {KA['w1']}
s_load_dwordx2 s[8:9], s[0:1], {KA['w2']}
s_load_dwordx2 s[10:11], s[0:1], {KA['ws']}
s_getpc_b64 s[40:41]
L1_pc:
s_add_u32 s40, s40, k3_kernel-L1_pc
s_addc_u32 s41, s41, 0
s_sub_u32 s3, s2, {NC}
s_and_b32 s12, s3, 7
s_lshr_b32 s13, s3, 3
s_cmp_ge_u32 s13, 9
s_cselect_b32 s14, 1, 0
s_cselect_b32 s15, 9, 0
s_sub_u32 s15, s13, s15
s_mul_i32 s16, s12, 576
s_lshl_b32 s17, s15, 6
s_add_u32 s16, s16, s17
s_lshl_b32 s17, s16, 1
v_lshrrev_b32 v1, 3, v0
v_and_b32 v2, 7, v0
v_mul_u32_u24 v3, 9216, v1
v_lshl_add_u32 v3, v2, 4, v3
v_add_u32 v3, s17, v3
s_waitcnt lgkmcnt(0)
s_cmp_eq_u32 s14, 0
s_cselect_b32 s20, s4, s6
s_cselect_b32 s21, s5, s7
s_mov_b32 s22, {D*F*2}
s_mov_b32 s23, {SRD3}
"""
    body = "s_mov_b32 s18, 0\n"
    for j in range(18):
        body += f"buffer_load_dwordx4 v[{16+4*j}:{19+4*j}], v3, s[20:23], s18 offen nt\n"
        if j < 17: body += f"s_add_u32 s18, s18, {32*9216}\n"
    body += srd(24, 8, D*F*2) + srd(28, 10, 2*F*8, CS)
    body += f"s_mul_i32 s18, s12, {576*1152}\ns_mul_i32 s19, s13, {32*1152}\ns_add_u32 s18, s18, s19\nv_lshlrev_b32 v4, 4, v0\n"
    for j in range(9):
        body += f"buffer_load_dwordx4 v[{88+4*j}:{91+4*j}], v4, s[24:27], s18 offen nt\n"
        if j < 8: body += "s_add_u32 s18, s18, 4096\n"
    body += f"s_lshl_b32 s19, s13, 12\nv_add_u32 v5, s19, v4\n"
    body += f"v_min_u32 v5, L3_codeend-k3_kernel-16, v5\nglobal_load_dwordx4 v[124:127], v5, s[40:41] nt\n"
    body += "s_mov_b32 s32, 0x00003f80\ns_mov_b32 s33, 0x3f800000\n"
    for e in range(8): body += f"v_mov_b32 v{8+e}, 0\n"
    for j in range(18):
        for dw in range(4):
            for h in range(2):
                body += f"v_dot2_f32_bf16 v{8+2*dw+h}, v{16+4*j+dw}, s{32+h}, v{8+2*dw+h}\n"
    body += "s_nop 2\n" + (stamp(1) + "s_waitcnt lgkmcnt(0)\n" if st else "")
    for e in range(4): body += f"v_permlane32_swap_b32 v{8+e}, v{12+e}\n"
    for e in range(4): body += f"v_add_f32 v{8+e}, v{8+e}, v{12+e}\n"
    for e in range(2): body += f"v_permlane16_swap_b32 v{8+e}, v{10+e}\n"
    for e in range(2): body += f"v_add_f32 v{8+e}, v{8+e}, v{10+e}\n"
    body += """v_add_f32_dpp v8, v8, v8 row_ror:8 row_mask:0xf bank_mask:0xf
v_add_f32_dpp v9, v9, v9 row_ror:8 row_mask:0xf bank_mask:0xf
v_and_b32 v6, 8, v0
v_cmp_eq_u32 vcc, 0, v6
v_and_b32 v7, 63, v0
v_lshrrev_b32 v10, 3, v7
v_cndmask_b32 v8, v9, v8, vcc
v_lshl_add_u32 v10, v2, 3, v10
v_lshrrev_b32 v11, 6, v0
v_lshl_add_u32 v11, v11, 6, v10
v_lshlrev_b32 v11, 2, v11
ds_write_b32 v11, v8
s_waitcnt lgkmcnt(0)
s_barrier
v_lshlrev_b32 v11, 2, v7
ds_read2st64_b32 v[12:13], v11 offset0:0 offset1:1
ds_read2st64_b32 v[14:15], v11 offset0:2 offset1:3
s_mul_i32 s18, s14, 4608
s_add_u32 s18, s18, s16
s_lshl_b32 s18, s18, 3
v_cmp_gt_u32 vcc, 64, v0
v_lshlrev_b32 v11, 3, v0
v_cndmask_b32 v11, 2.0, v11, vcc
v_add_f32 v12, v12, v13
v_add_f32 v14, v14, v15
v_add_f32 v12, v12, v14
v_cvt_pk_bf16_f32 v13, v12, v12
v_and_b32 v15, 0xffff, v13
v_and_b32 v13, 0xffff0000, v13
v_sub_f32 v12, v12, v13
v_cvt_pk_bf16_f32 v12, v12, v12
v_and_or_b32 v14, v12, s34, v15
buffer_store_dwordx2 v[14:15], v11, s[28:31], s18 offen
"""
    body = body.replace("s_mov_b32 s32, 0x00003f80", "s_mov_b32 s34, 0xffff0000\ns_mov_b32 s32, 0x00003f80")
    seq, _ = finish(lines(body))
    t += text_of(seq)
    if st: t += stamp(2) + "s_waitcnt vmcnt(0)\n" + stamp(3) + stamp_store(1, 4, "k1b")
    t += "L1_end:\ns_endpgm\n"
    t += kdesc(n, 248, 248)
    return t, f"; @launch kernel={n} grid=({K1_GRID},1,1) block=(256,1,1) lds={K1_LDS}\n"
```

```python
from cfg import *
from asmcore import *

RING, SLOT, NSLOT = 0, 12288, 6
XB = 73728
EH = XB + 73728
K3_LDS = 163840
SCR = EH
ZERO = SCR + 2048
DUMMY = SCR + 4096
LOG2E = "0xbfb8aa3b"

sW, sS, sM = 3, 4, 5
rW13, rW2, rHT, rCS, rPW, rPR, rFL, rOUT = 8, 12, 16, 20, 24, 28, 32, 36
sOFF, sXOFF, sM0, sM0X, sCS2, sPO = 40, 41, 42, 43, 44, 45
sD1, sD2, sD3 = 46, 48, 50
ACC = (16, 112)
vA = (1, 2, 3); vD = (4, 5, 6); vB0, vB1 = 7, 8; vHa, vHb = 9, 10
vAV = 12
TMP = 208
PK = 216
vXD, vR0, vR1, vC0, vC1, vCW, vCSa = 224, 225, 226, 227, 228, 229, 230
vSW, vSR, vFR = 231, 232, 233
vDA3, vDA2, vDD3 = 234, 235, 236
vD2 = (237, 238, 239)
vL0, vL1, vRH, vP3, vP2 = 240, 241, 242, 243, 244
vST = 246
aAF, aBF, aFA, aFB, aCV, aSS, aSG, aONE = 0, 24, 56, 92, 100, 112, 116, 120
aPK0, aPK1, aRH, aSEL, aRD = 124, 132, 204, 216, 56

def hoff(sig): return 73728 + 4096 * sig if sig < 4 else 16384 + 4096 * (sig - 4)

def prologue():
    t = f"""
s_load_dwordx4 s[52:55], s[0:1], {KA['w1']}
s_load_dwordx4 s[56:59], s[0:1], {KA['w2']}
s_load_dwordx2 s[60:61], s[0:1], {KA['ws']}
v_lshrrev_b32 v16, 6, v0
v_and_b32 v17, 63, v0
v_readfirstlane_b32 s{sW}, v16
s_and_b32 s{sS}, s2, 7
s_lshr_b32 s{sM}, s2, 3
v_lshrrev_b32 v18, 3, v17
v_and_b32 v19, 7, v17
s_and_b32 s62, s{sW}, 1
s_lshr_b32 s63, s{sW}, 1
s_mul_i32 s{sM0}, s{sW}, 3072
s_lshl_b32 s{sM0X}, s{sW}, 10
s_add_u32 s{sM0X}, s{sM0X}, {XB}
v_bfe_u32 v20, v17, 4, 1
v_lshrrev_b32 v21, 5, v17
v_xor_b32 v22, s62, v21
v_lshl_or_b32 v22, v22, 1, v20
v_lshlrev_b32 v22, 1, v22
v_xor_b32 v22, v22, v19
s_lshl_b32 s64, s{sW}, 3
v_add_u32 v23, s64, v18
v_lshlrev_b32 v{vXD}, 12, v23
v_lshl_add_u32 v{vXD}, v22, 4, v{vXD}
s_lshl_b32 s65, s62, 1
v_or_b32 v24, s65, v20
v_lshlrev_b32 v24, 1, v24
v_xor_b32 v24, v24, v19
s_lshl_b32 s66, s63, 3
v_add_u32 v25, s66, v18
v_mul_u32_u24 v{vD[0]}, 9216, v25
v_lshl_add_u32 v{vD[0]}, v24, 4, v{vD[0]}
v_add_u32 v{vD[0]}, 2048, v{vD[0]}
v_subrev_u32 v{vD[1]}, 896, v{vD[0]}
v_subrev_u32 v{vD[2]}, 1792, v{vD[0]}
s_mul_i32 s67, s{sS}, 1152
s_lshl_b32 s68, s{sM}, 7
s_waitcnt lgkmcnt(0)
s_cmp_eq_u32 s62, 0
s_cselect_b32 s{rW13}, s52, s54
s_cselect_b32 s{rW13+1}, s53, s55
s_add_u32 s{rW13}, s{rW13}, s67
s_addc_u32 s{rW13+1}, s{rW13+1}, 0
s_sub_u32 s{rW13}, s{rW13}, 2048
s_subb_u32 s{rW13+1}, s{rW13+1}, 0
s_sub_u32 s{rW13+2}, {D*F*2+2048}, s67
s_mov_b32 s{rW13+3}, {SRD3}
s_add_u32 s69, s68, {HT}
s_add_u32 s{rHT}, s60, s69
s_addc_u32 s{rHT+1}, s61, 0
s_sub_u32 s{rHT+2}, {D*S*2}, s68
s_mov_b32 s{rHT+3}, {SRD3}
"""
    return t

def setup2():
    t = f"""
v_bfe_u32 v26, v17, 2, 2
v_and_b32 v27, 3, v17
v_lshrrev_b32 v28, 4, v17
v_and_b32 v29, 15, v17
v_and_b32 v30, 31, v17
v_lshrrev_b32 v31, 1, v26
v_lshl_or_b32 v32, v20, 1, v31
v_mul_u32_u24 v33, 3072, v20
v_mul_u32_u24 v34, 6144, v21
v_add_u32 v33, v33, v34
v_lshl_add_u32 v33, v26, 7, v33
v_lshl_add_u32 v33, v27, 3, v33
s_lshl_b32 s64, s{sW}, 1
"""
    for i in range(3):
        if i == 1: t += f"s_add_u32 s64, s64, 1\n"
        if i == 2: t += f"s_add_u32 s64, s{sW}, 8\n"
        t += f"""s_lshr_b32 s65, s64, 2
s_lshl_b32 s65, s65, 10
s_and_b32 s66, s64, 3
v_xor_b32 v34, s66, v32
v_lshl_add_u32 v34, v34, 5, v33
v_add_u32 v{vA[i]}, s65, v34
"""
    t += f"""
v_xor_b32 v34, v20, v31
v_lshl_or_b32 v34, v21, 1, v34
v_lshl_add_u32 v35, v21, 3, v26
v_lshlrev_b32 v35, 7, v35
v_lshl_add_u32 v35, v34, 5, v35
v_lshl_add_u32 v35, v27, 3, v35
v_add_u32 v{vR0}, {XB}, v35
v_xor_b32 v{vR1}, 64, v{vR0}
v_xor_b32 v34, s{sW}, v32
v_lshl_add_u32 v35, v28, 3, v26
v_lshlrev_b32 v35, 7, v35
v_lshl_add_u32 v35, v34, 5, v35
v_lshl_add_u32 v35, v27, 3, v35
v_add_u32 v{vC0}, {XB}, v35
v_xor_b32 v{vC1}, 64, v{vC0}
v_lshlrev_b32 v35, 4, v17
v_add_u32 v{vL0}, {XB}, v35
v_add_u32 v{vL1}, {XB+40960}, v35
v_add_u32 v{vCW}, s{sM0X}, v35
v_lshlrev_b32 v35, 10, v20
v_lshl_add_u32 v35, v21, 8, v35
v_lshl_add_u32 v35, v29, 4, v35
v_add_u32 v{vB0}, {XB}, v35
v_add_u32 v{vB1}, {XB+40960}, v35
s_lshl_b32 s64, s{sW}, 12
s_add_u32 s64, s64, {XB+16384}
v_add_u32 v{vHa}, s64, v35
s_lshl_b32 s64, s63, 12
s_lshl_b32 s65, s62, 9
s_add_u32 s64, s64, s65
s_add_u32 s64, s64, {XB+16384}
v_add_u32 v{vHb}, s64, v35
v_mul_u32_u24 v34, 36864, v20
v_lshl_add_u32 v34, v29, 3, v34
s_lshl_b32 s64, s{sW}, 8
v_add_u32 v34, s64, v34
v_cmp_eq_u32 vcc, 0, v21
s_sub_u32 s{sCS2}, 8, s{sW}
s_lshl_b32 s{sCS2}, s{sCS2}, 7
v_cndmask_b32 v{vCSa}, 2.0, v34, vcc
s_mul_i32 s64, s{sS}, 4608
s_add_u32 s65, s64, {CS}
s_add_u32 s{rCS}, s60, s65
s_addc_u32 s{rCS+1}, s61, 0
s_sub_u32 s{rCS+2}, {2*F*8}, s64
s_mov_b32 s{rCS+3}, {SRD3}
v_lshlrev_b32 v34, 4, v30
v_add_u32 v{vSR}, {SCR}, v34
v_add_u32 v34, {SCR+8}, v34
v_mov_b32 v35, {ZERO}
v_cndmask_b32 v{vFR}, v35, v34, vcc
v_lshrrev_b32 v34, 2, v29
v_cmp_eq_u32 vcc, v34, v28
s_lshl_b32 s64, s{sW}, 8
s_add_u32 s64, s64, {SCR}
v_lshl_add_u32 v34, v29, 4, s64
v_lshlrev_b32 v35, 4, v17
v_add_u32 v35, {DUMMY}, v35
v_cndmask_b32 v{vSW}, v35, v34, vcc
v_cmp_eq_u32 s[{sD1}:{sD1+1}], 1, v27
v_cmp_eq_u32 s[{sD2}:{sD2+1}], 2, v27
v_cmp_eq_u32 s[{sD3}:{sD3+1}], 3, v27
v_mov_b32 v34, 0
v_mov_b32 v35, 0
v_mov_b32 v36, {ZERO}
ds_write_b64 v36, v[34:35]
ds_write_b64 v36, v[34:35] offset:512
v_mov_b32 v36, 0x3f803f80
"""
    for j in range(4): t += f"v_accvgpr_write_b32 a{aONE+j}, v36\n"
    for j in range(9): t += f"v_accvgpr_write_b32 a{aFA+4*j+2}, 0\nv_accvgpr_write_b32 a{aFA+4*j+3}, 0\n"
    for j in range(2): t += f"v_accvgpr_write_b32 a{aFB+4*j+2}, 0\nv_accvgpr_write_b32 a{aFB+4*j+3}, 0\n"
    t += f"""
v_mul_u32_u24 v35, 5632, v21
v_mul_u32_u24 v34, 3072, v20
v_sub_u32 v{vDA3}, v35, v34
v_mul_u32_u24 v34, 5632, v20
v_sub_u32 v{vDA2}, v35, v34
s_lshl_b32 s64, s63, 1
v_or_b32 v34, s64, v20
v_lshlrev_b32 v34, 1, v34
v_xor_b32 v34, v34, v19
s_lshl_b32 s64, s62, 3
v_add_u32 v35, s64, v18
v_mul_u32_u24 v35, 1152, v35
v_lshl_add_u32 v35, v34, 4, v35
s_mul_i32 s64, s63, 384
s_add_u32 s64, s64, 2048
v_add_u32 v35, s64, v35
v_sub_u32 v{vDD3}, v{vD[0]}, v35
v_lshrrev_b32 v34, 1, v18
v_and_b32 v34, 3, v34
v_lshlrev_b32 v34, 1, v34
v_xor_b32 v34, v34, v19
s_lshl_b32 s64, s{sW}, 3
v_add_u32 v35, s64, v18
v_mul_u32_u24 v35, 1152, v35
v_lshl_add_u32 v35, v34, 4, v35
v_add_u32 v{vD2[0]}, {768+2048}, v35
v_add_u32 v{vD2[1]}, {768+2048-896}, v35
v_add_u32 v{vD2[2]}, {768+2048-1792}, v35
s_mul_i32 s64, s{sS}, {576*1152}
s_add_u32 s{rW2}, s56, s64
s_addc_u32 s{rW2+1}, s57, 0
s_sub_u32 s{rW2}, s{rW2}, 2048
s_subb_u32 s{rW2+1}, s{rW2+1}, 0
s_sub_u32 s{rW2+2}, {D*F*2+2048}, s64
s_mov_b32 s{rW2+3}, {SRD3}
s_mul_i32 s64, s{sW}, 768
v_lshrrev_b32 v34, 3, v30
v_mul_u32_u24 v34, 3072, v34
v_lshl_add_u32 v34, v19, 5, v34
v_lshl_add_u32 v34, v21, 4, v34
v_add_u32 v{vP3}, s64, v34
v_bfe_u32 v34, v17, 3, 1
v_lshl_or_b32 v34, v20, 1, v34
v_mul_u32_u24 v34, 3072, v34
v_lshl_add_u32 v34, v19, 5, v34
v_lshl_add_u32 v34, v21, 4, v34
v_add_u32 v{vP2}, s64, v34
s_mul_i32 s64, s{sM}, 589824
s_add_u32 s64, s64, {PT}
s_mul_i32 s65, s{sS}, 24576
s_add_u32 s65, s65, s64
s_add_u32 s{rPW}, s60, s65
s_addc_u32 s{rPW+1}, s61, 0
s_mov_b32 s{rPW+2}, {2*196608+24576}
s_mov_b32 s{rPW+3}, {SRD3}
s_mul_i32 s65, s{sS}, 3072
s_add_u32 s65, s65, s64
s_add_u32 s{rPR}, s60, s65
s_addc_u32 s{rPR+1}, s61, 0
s_mov_b32 s{rPR+2}, {2*196608+7*24576+3072}
s_mov_b32 s{rPR+3}, {SRD3}
s_mul_i32 s64, s{sM}, 384
s_add_u32 s64, s64, {FL}
s_add_u32 s{rFL}, s60, s64
s_addc_u32 s{rFL+1}, s61, 0
s_mov_b32 s{rFL+2}, 384
s_mov_b32 s{rFL+3}, {SRD3}
s_mul_i32 s64, s{sM}, {64*1152}
s_add_u32 s{rOUT}, s58, s64
s_addc_u32 s{rOUT+1}, s59, 0
s_mov_b32 s{rOUT+2}, {64*1152}
s_mov_b32 s{rOUT+3}, {SRD3}
v_lshrrev_b32 v34, 4, v0
v_mul_u32_u24 v35, 43, v34
v_lshrrev_b32 v35, 7, v35
v_mul_u32_u24 v36, 3, v35
v_sub_u32 v36, v34, v36
v_lshl_add_u32 v37, v35, 1, v36
v_add_u32 v35, 8, v35
v_cmp_eq_u32 vcc, 2, v36
v_bfe_u32 v38, v0, 1, 3
v_and_b32 v39, 1, v0
v_cndmask_b32 v37, v37, v35, vcc
s_lshr_b32 s64, s{sS}, 1
s_lshl_b32 s64, s64, 10
s_and_b32 s65, s{sS}, 1
s_lshl_b32 s65, s65, 7
s_add_u32 s64, s64, s65
s_add_u32 s64, s64, {XB}
v_lshrrev_b32 v34, 1, v37
v_lshlrev_b32 v34, 12, v34
v_and_b32 v35, 1, v37
v_lshl_or_b32 v35, v35, 1, v39
v_lshl_add_u32 v34, v35, 8, v34
v_lshl_add_u32 v34, v38, 4, v34
v_add_u32 v{vRH}, s64, v34
s_lshl_b32 s64, s{sS}, 3
v_add_u32 v34, s64, v38
v_mul_u32_u24 v34, 1152, v34
v_lshl_add_u32 v34, v37, 5, v34
v_lshl_add_u32 v11, v39, 4, v34
v_lshrrev_b32 v34, 2, v29
v_cmp_eq_u32 vcc, v34, v28
v_and_b32 v34, 1, v17
v_lshlrev_b32 v34, 4, v34
v_mov_b32 v35, 0x3f80
v_lshlrev_b32 v35, v34, v35
v_cndmask_b32 v35, 0, v35, vcc
v_and_b32 v34, 2, v17
v_cmp_eq_u32 vcc, 0, v34
v_accvgpr_write_b32 a{aSEL+2}, 0
v_accvgpr_write_b32 a{aSEL+3}, 0
v_cndmask_b32 v36, 0, v35, vcc
v_cndmask_b32 v34, v35, 0, vcc
v_accvgpr_write_b32 a{aSEL+4}, 0
v_accvgpr_write_b32 a{aSEL+5}, 0
v_accvgpr_write_b32 a{aSEL}, v36
v_accvgpr_write_b32 a{aSEL+1}, v34
v_accvgpr_write_b32 a{aSEL+6}, v36
v_accvgpr_write_b32 a{aSEL+7}, v34
"""
    return t
vO = 11

NU = 162
def utype(u): return "g1" if u < 108 else ("p3" if u < 144 else "g2")

def dma_unit(u):
    slot = RING + SLOT * (u % NSLOT)
    ty = utype(u)
    if ty == "g1": off = (u % 36) * 16 * 9216 + (u // 36) * 384; r = rW13; v = vD
    elif ty == "p3": off = (u - 108) * 16 * 1152; r = rW2; v = vD
    else: off = (u - 144) * 32 * 1152; r = rW2; v = vD2
    sc = [Ins(f"s_add_u32 m0, s{sM0}, {slot}"), Ins(f"s_mov_b32 s{sOFF}, {off}")]
    ld = [Ins(f"buffer_load_dwordx4 v{v[p]}, s[{r}:{r+3}], s{sOFF} offen offset:{1024*p} lds") for p in range(3)]
    return sc, ld
def dma_x(j):
    sc = [Ins(f"s_add_u32 m0, s{sM0X}, {4096*j}"), Ins(f"s_mov_b32 s{sXOFF}, {131072*j}")]
    return sc, Ins(f"buffer_load_dwordx4 v{vXD}, s[{rHT}:{rHT+3}], s{sXOFF} offen lds")
def rd_a(u):
    slot = RING + SLOT * (u % NSLOT); hs = {"g1": 512, "p3": 3072, "g2": 3072}[utype(u)]
    b = aAF + 12 * (u & 1)
    return [[Ins(f"ds_read_b64_tr_b16 a[{b+4*i+2*h}:{b+4*i+2*h+1}], v{vA[i]} offset:{slot+hs*h}") for h in range(2)] for i in range(3)]
BUMP = 9
def rd_braw(u):
    j, k = u >> 1, u & 1; b = aBF + 8 * (u & 1); o = 4096 * (j - (BUMP if j >= BUMP else 0)) + 2048 * k
    return [[Ins(f"ds_read_b64_tr_b16 a[{b+4*T+2*h}:{b+4*T+2*h+1}], v{vR1 if T ^ h else vR0} offset:{o+512*h}") for h in range(2)] for T in range(2)]
def rd_b32(u):
    kk = u % 36; b = aBF + 8 * (u & 1)
    o = (4096 * (kk >> 1) if u < 108 else hoff(kk >> 1)) + 512 * (kk & 1)
    v = vB0
    if o + 2048 > 65535: v = vB1; o -= 40960
    return [[Ins(f"ds_read_b128 a[{b+4*T}:{b+4*T+3}], v{v} offset:{o+2048*T}")] for T in range(2)]
def rd_b16(u):
    b = aBF + 16 * ((u + 1) & 1); o = hoff(u - 144); v = vL0
    if o + 3072 > 65535: v = vL1; o -= 40960
    return [[Ins(f"ds_read_b128 a[{b+4*tt}:{b+4*tt+3}], v{v} offset:{o+1024*tt}")] for tt in range(4)]
def rd_b(u): return rd_braw(u) if u < 36 else (rd_b32(u) if u < 144 else rd_b16(u))
def rd_cv(j):
    b = aCV + 4 * (j % 3); o = 4096 * (j - (BUMP if j >= BUMP else 0))
    return [Ins(f"ds_read_b64_tr_b16 a[{b+2*h}:{b+2*h+1}], v{vC1 if h else vC0} offset:{o+512*h}") for h in range(2)]

def acc32(p, i, T): return ACC[p & 1] + 16 * (2 * i + T)
def acc16(i, tt): return ACC[0] + 4 * (4 * i + tt)

def gen_k3(st=False, lag=0, cap32=5, fold0=42, st_lo=146, st_hi=161, margin32=2, margin16=4, verbose=False, dump=False):
    n = "k3_kernel"
    flat = lambda x: [y for z in x for y in z]
    head = kbegin(n) + (stamp(0) if st else "") + "s_cmp_ge_u32 s2, 256\ns_cbranch_scc1 L3_end\n"
    pro = lines(prologue())
    W = {}; X = {}
    order = [("x", 0), ("w", 0), ("w", 1), ("x", 1), ("w", 2), ("w", 3), ("x", 2), ("w", 4), ("w", 5)]
    for ty, k in order:
        if ty == "x":
            s_, l_ = dma_x(k); X[k] = l_; pro += s_ + [l_]
        else:
            s_, l_ = dma_unit(k); W[k] = l_; pro += s_ + l_
    s2 = lines(setup2())
    pro += s2
    zw = [i for i in s2 if i.kind == "ldsw"]
    pro.append(Ins("s_barrier", needs=[X[0]] + W[0] + zw))
    if st: pro += lines(stamp(1) + "s_waitcnt lgkmcnt(0)")
    RA = {0: rd_a(0)}; RB = {0: rd_b(0)}; CV = {0: rd_cv(0)}
    pro += RB[0][0] + RA[0][0] + RB[0][1] + RA[0][1] + RA[0][2] + CV[0]
    beta = {0: Ins("s_barrier", needs=W[1] + flat(RA[0]))}
    pro.append(beta[0])
    sc = Sched()
    us, ue, pos = {}, {}, {}
    foldpos = {}; statpos = {}
    def fold(p):
        for i in range(3):
            for T in range(2):
                a = acc32(p, i, T); fa = aFA + 4 * (3 * p + i)
                foldpos[(p, i, T)] = sc.mfma(f"v_mfma_f32_32x32x16_bf16 v[{a}:{a+15}], a[{fa}:{fa+3}], a[{aFB+4*T}:{aFB+4*T+3}], v[{a}:{a+15}]")
    for u in range(NU):
        us[u] = len(sc.back)
        if u < 144:
            p = u // 36; ab = aAF + 12 * (u & 1); bb = aBF + 8 * (u & 1)
            for i in range(3):
                for T in range(2):
                    a = acc32(p, i, T); c = "0" if u % 36 == 0 else f"v[{a}:{a+15}]"
                    pos[(u, i, T)] = sc.mfma(f"v_mfma_f32_32x32x16_bf16 v[{a}:{a+15}], a[{ab+4*i}:{ab+4*i+3}], a[{bb+4*T}:{bb+4*T+3}], {c}")
                if u < 36 and u % 2 == 1 and i == 0:
                    j = u >> 1; cv = aCV + 4 * (j % 3)
                    cs = "0" if j == 0 else f"a[{aSS}:{aSS+3}]"; cg = "0" if j == 0 else f"a[{aSG}:{aSG+3}]"
                    statpos[j] = sc.mfma(f"v_mfma_f32_16x16x32_bf16 a[{aSS}:{aSS+3}], a[{aONE}:{aONE+3}], a[{cv}:{cv+3}], {cs}")
                    sc.mfma(f"v_mfma_f32_16x16x32_bf16 a[{aSG}:{aSG+3}], a[{cv}:{cv+3}], a[{cv}:{cv+3}], {cg}")
                if u == fold0 and i == 0: fold(0)
                if u == 72 and i == 0: fold(1)
                if u == 108 and i == 0: fold(2)
        else:
            ab = aAF + 12 * (u & 1); bb = aBF + 16 * ((u + 1) & 1)
            for i in range(3):
                for tt in range(4):
                    a = acc16(i, tt); c = "0" if u == 144 else f"v[{a}:{a+3}]"
                    pos[(u, i, tt)] = sc.mfma(f"v_mfma_f32_16x16x32_bf16 v[{a}:{a+3}], a[{ab+4*i}:{ab+4*i+3}], a[{bb+4*tt}:{bb+4*tt+3}], {c}")
        ue[u] = len(sc.back) - 1
    beta[0].gap = -1
    for u in range(1, NU):
        beta[u] = sc.add(Ins("s_barrier"), lo=ue[u-1], hi=ue[u-1])
    def margin(u): return margin32 if u < 144 else margin16
    vm_prev = [None]
    def add_vm(ins, lo, hi, after=(), sticky=None):
        af = list(after) + ([(vm_prev[0], 1)] if vm_prev[0] else [])
        x = sc.add(ins, lo=lo, hi=hi, after=af, sticky=sticky); vm_prev[0] = x; return x
    bumpR = bumpC = None
    lastA = {}
    cs_loads = []
    stores = []
    HW = {}
    def epi(p, g0, g1, hw_after):
        items = []
        for i in range(3):
            for T in range(2):
                a = acc32(p, i, T); A_, V_ = vAV + 2 * T, vAV + 2 * T + 1; pk = PK + 4 * ((2 * i + T) & 1)
                for h in range(2):
                    t0 = TMP + 4 * h; rs = range(4 * h, 4 * h + 4)
                    blk = [f"v_mul_f32 v{t0+r%4}, v{A_}, v{a+r}" for r in rs]
                    blk += [f"v_mul_f32 v{a+8+r}, v{a+r}, v{a+8+r}" for r in rs]
                    blk += [f"v_exp_f32 v{t0+r%4}, v{t0+r%4}" for r in rs]
                    blk += [f"v_fma_f32 v{t0+r%4}, v{t0+r%4}, v{V_}, v{V_}" for r in rs]
                    blk += [f"v_rcp_f32 v{t0+r%4}, v{t0+r%4}" for r in rs]
                    blk += [f"v_mul_f32 v{a+8+r}, v{a+8+r}, v{t0+r%4}" for r in rs]
                    blk += [f"v_cvt_pk_bf16_f32 v{pk+2*h+k}, v{a+8+4*h+2*k}, v{a+8+4*h+2*k+1}" for k in range(2)]
                    items += [(Ins(x), (p, i, T)) for x in blk]
                direct = p == 2 or (p == 0 and i < 2)
                if direct: items.append((hwrite(p, i, T, f"v[{pk}:{pk+3}]"), (p, i, T)))
                else:
                    dst = aPK0 + 4 * T if p == 0 else aPK1 + 4 * (2 * i + T)
                    items += [(Ins(f"v_accvgpr_write_b32 a{dst+k}, v{pk+k}"), (p, i, T)) for k in range(4)]
        tot = sum(x.cost for x, _ in items); acc_ = 0; prev = None
        for x, key in items:
            lo = max(g0 + (g1 - g0) * acc_ // tot * 9 // 10, foldpos[key] + 2)
            af = [(prev, 0)] if prev else []
            if x.kind == "ldsw": af.append((hw_after, 1))
            prev = sc.add(x, lo=lo, hi=g0 + (g1 - g0) * (acc_ + x.cost) // tot, after=af); acc_ += x.cost
        return prev
    def hwrite(p, i, T, src):
        if i < 2: txt = f"ds_write_b128 v{vHa}, {src} offset:{(57344, 8192, 32768)[p] + 2048*T + 512*i}"
        else: txt = f"ds_write_b128 v{vHb}, {src} offset:{24576*p + 2048*T}"
        HW[(p, i, T)] = Ins(txt); return HW[(p, i, T)]
    rebaseA = {}
    for u in range(NU):
        v = u + 1
        if v < NU:
            RA[v] = rd_a(v); RB[v] = rd_b(v)
            pre = []
            if v in (108, 144):
                for i in range(3):
                    txt = f"v_sub_u32 v{vA[i]}, v{vA[i]}, v{vDA3}" if v == 108 else f"v_add_u32 v{vA[i]}, v{vA[i]}, v{vDA2}"
                    pre.append(sc.add(txt, lo=us[u-1], hi=ue[u-1], after=[(x, 0) for x in RA[u][i] if x.gap != -1]))
            if v == 2 * BUMP:
                bumpR = [sc.add(f"v_add_u32 v{r}, {4096*BUMP}, v{r}", lo=us[u-1], hi=ue[u-1], after=[(x, 0) for x in flat(RB[u])]) for r in (vR0, vR1)]
            hi = ue[u] - margin(u)
            seqr = ([RB[v][0], RA[v][0], RB[v][1], RA[v][1], RA[v][2]] if v < 144 else [RA[v][0], RB[v][0], RB[v][1], RB[v][2], RB[v][3], RA[v][1], RA[v][2]])
            prev = None
            nrd = len(flat(seqr)); k = 0
            for x in flat(seqr):
                af = [(beta[u], 1)] + ([(prev, 0)] if prev else []) + [(y, 0) for y in pre] + ([(y, 0) for y in bumpR] if v == 2 * BUMP else [])
                prev = sc.add(x, lo=us[u], hi=max(us[u], hi - (nrd - 1 - k) // (2 if u < 144 else 1)), after=af); k += 1
            if lag == 0: beta[v].needs += flat(RA[v])
            if v + 1 < NU: pass
        if u < 35 and u % 2 == 1:
            j = (u + 1) // 2
            CV[j] = rd_cv(j)
            if j == BUMP:
                bumpC = [sc.add(f"v_add_u32 v{r}, {4096*BUMP}, v{r}", lo=us[u-1], hi=ue[u-1], after=[(x, 0) for x in CV[j-1]]) for r in (vC0, vC1)]
            for x in CV[j]:
                sc.add(x, lo=us[u], hi=ue[u+1] - 2, after=[(beta[u], 1)] + ([(y, 0) for y in bumpC] if j == BUMP else []))
        if u < 36 and u % 2 == 0 and u // 2 + 3 < 18:
            j = u // 2 + 3; s_, l_ = dma_x(j); X[j] = add_vm(l_, us[u], ue[u], after=[(beta[u], 1)], sticky=s_)
        if 3 <= u < 21 and u % 2 == 1:
            k = (u - 3) // 2; p, i = divmod(k, 3)
            txt = f"buffer_load_dwordx2 a[{aFA+4*k}:{aFA+4*k+1}], v{vCSa}, s[{rCS}:{rCS+3}], {'s%d' % sCS2 if i == 2 else 0} offen offset:{1536*p + (128 if i == 1 else 0)}"
            add_vm(Ins(txt), us[u], ue[u])
        d = u + NSLOT - lag
        if NSLOT <= d < NU:
            s_, l_ = dma_unit(d); W[d] = l_
            af = [(beta[u], 1)]
            if d == 108:
                af += [(sc.add(f"v_sub_u32 v{vD[k]}, v{vD[k]}, v{vDD3}", lo=us[u-1], hi=ue[u-1], after=[(W[107][k], 0)]), 0) for k in range(3)]
            for k, x in enumerate(l_):
                add_vm(x, us[u], ue[u] - (2 - k) * (1 if u < 144 else 2) - (0 if u < 144 else 1), after=af, sticky=s_ if k == 0 else None)
        if u >= 144:
            pass
        if u + 1 < NU and u + 2 in W: beta[u+1].needs += W[u+2]
        stores.append(None)
    for j in range(1, 18): beta[2*j-1].needs.append(X[j])
    prevw = None
    for j in range(18):
        b = 2 * j + 2
        beta[b].needs += flat(RB[2*j+1]) + CV[j]
        af = [(beta[b], 1)]
        if j == BUMP: af.append((sc.add(f"v_add_u32 v{vCW}, {4096*BUMP}, v{vCW}", lo=us[b-1], hi=ue[b-1], after=[(prevw, 0)]), 0))
        cv = aCV + 4 * (j % 3)
        prevw = sc.add(f"ds_write_b128 v{vCW}, a[{cv}:{cv+3}] offset:{4096*(j-(BUMP if j >= BUMP else 0))}", lo=us[b], hi=ue[b], after=af)
        beta[max(b + 2, 35) if j == 0 else b + 2].needs.append(prevw)
    t = vST
    stat = [f"v_accvgpr_read_b32 v{t}, a{aSS}"] + [f"v_accvgpr_read_b32 v{t+1+r}, a{aSG+r}" for r in range(4)]
    stat += [f"v_cndmask_b32 v{t+1}, v{t+1}, v{t+2}, s[{sD1}:{sD1+1}]", f"v_cndmask_b32 v{t+1}, v{t+1}, v{t+3}, s[{sD2}:{sD2+1}]",
             f"v_cndmask_b32 v{t+1}, v{t+1}, v{t+4}, s[{sD3}:{sD3+1}]",
             f"v_mul_f32 v{t}, 0xbae38e39, v{t}", f"v_mul_f32 v{t+1}, 0x3ae38e39, v{t+1}",
             f"v_fma_f32 v{t+1}, -v{t}, v{t}, v{t+1}", f"v_max_f32 v{t+1}, 0, v{t+1}", f"v_add_f32 v{t+3}, 0x3727c5ac, v{t+1}",
             f"v_rsq_f32 v{t+2}, v{t+3}", f"v_cvt_pk_bf16_f32 v{t+4}, v{t}, v{t}", f"v_mul_f32 v{t+2}, {LOG2E}, v{t+2}",
             f"v_and_b32 v{t+1}, 0xffff0000, v{t+4}", f"v_sub_f32 v{t}, v{t}, v{t+1}", f"v_cvt_pk_bf16_f32 v{t+5}, v{t}, 0",
             f"ds_write_b128 v{vSW}, v[{t+2}:{t+5}]"]
    prev = None
    for x in stat: prev = sc.add(x, lo=statpos[17] + 3, hi=ue[fold0-4], after=[(prev, 0)] if prev else [])
    beta[fold0-2].needs.append(prev)
    srd_ = []
    for T in range(2):
        srd_.append(sc.add(f"ds_read_b64 a[{aFB+4*T}:{aFB+4*T+1}], v{vFR} offset:{512*T}", lo=us[fold0-2], hi=ue[fold0-1], after=[(beta[fold0-2], 1)]))
        srd_.append(sc.add(f"ds_read_b64 v[{vAV+2*T}:{vAV+2*T+1}], v{vSR} offset:{512*T}", lo=us[fold0-2], hi=ue[fold0-1], after=[(beta[fold0-2], 1)]))
    beta[fold0+1].needs += srd_
    epi(0, ue[fold0], ue[70], beta[fold0+1])
    epi(1, ue[72], ue[106], beta[72])
    epi(2, ue[108], ue[129], beta[108])
    for (p, i, T), x in list(HW.items()):
        if p == 0: beta[104].needs.append(x)
        else: beta[131 if i < 2 else 139].needs.append(x)
    rh = [sc.add(f"ds_read_b128 a[{aRH+4*g}:{aRH+4*g+3}], v{vRH} offset:{24576*g}", lo=us[80+2*g], hi=ue[100]) for g in range(3)]
    beta[108].needs += rh + flat(RB[107])
    prev = None
    for p, i, T in [(0, 2, 0), (0, 2, 1)] + [(1, i, T) for i in range(3) for T in range(2)]:
        src = aPK0 + 4 * T if p == 0 else aPK1 + 4 * (2 * i + T)
        prev = sc.add(hwrite(p, i, T, f"a[{src}:{src+3}]"), lo=us[108], hi=ue[113], after=[(beta[108], 1)] + ([(prev, 1)] if prev else []))
        beta[115].needs.append(prev)
    outs = []
    k = 0
    for gam in range(2):
        for T in range(2):
            for i in range(3):
                a = acc32(3, i, T) + 8 * gam; pk = PK + 4 * (k & 1)
                blk = [f"v_cvt_pk_bf16_f32 v{pk+e}, v{a+2*e}, v{a+2*e+1}" for e in range(4)]
                blk += [f"v_permlane32_swap_b32 v{pk}, v{pk+2}", f"v_permlane32_swap_b32 v{pk+1}, v{pk+3}"]
                stx = Ins(f"buffer_store_dwordx4 v[{pk}:{pk+3}], v{vP3}, s[{rPW}:{rPW+3}], s{sPO} offen offset:{256*i} sc1")
                outs.append((blk, stx, [Ins(f"s_mov_b32 s{sPO}, {gam*196608 + T*12288}")] if i == 0 else None)); k += 1
    prev = None; ST = []
    g0, g1 = us[st_lo], ue[st_hi]
    for idx, (blk, stx, sticky) in enumerate(outs):
        lo = g0 + (g1 - g0) * idx // len(outs); hi = g0 + (g1 - g0) * (idx + 1) // len(outs)
        for x in blk:
            af = ([(prev, 0)] if prev else []) + ([(ST[idx-2], 1)] if idx >= 2 else [])
            prev = sc.add(x, lo=max(lo - 8, us[144] + 2), hi=hi, after=af)
        prev = sc.add(stx, lo=lo, hi=hi + 2, after=[(prev, 1)], sticky=sticky); ST.append(prev)
    main = sc.run(cap32=cap32, report=True)
    if verbose:
        import collections
        byu = collections.Counter()
        for g, kd in sc.overlog:
            u = max(x for x in us if us[x] <= g); byu[(u // 6 * 6, kd)] += 1
        print(sorted(byu.items()))
    for x in sc.items:
        if x.kind == "dma":
            assert sum(1 for y in sc.items if y.kind == "dma" and y.gap == x.gap) == 1, ("two DMA in gap", x.gap)
    tail = []
    k = 0
    for i in range(3):
        for P in range(2):
            pk = TMP + 4 * (k % 4); k += 1
            for h in range(2):
                a = acc16(i, 2 * P + h)
                tail += [Ins(f"v_cvt_pk_bf16_f32 v{pk+2*h+e}, v{a+2*e}, v{a+2*e+1}") for e in range(2)]
            tail += [Ins(f"v_permlane16_swap_b32 v{pk}, v{pk+2}"), Ins(f"v_permlane16_swap_b32 v{pk+1}, v{pk+3}")]
            tail += [Ins(f"s_mov_b32 s{sPO}, {2*196608 + P*12288}"),
                     Ins(f"buffer_store_dwordx4 v[{pk}:{pk+3}], v{vP2}, s[{rPW}:{rPW+3}], s{sPO} offen offset:{256*i} sc1")]
    seq = pro + main + (lines(stamp(2)) if st else []) + tail
    seq, pads = finish(seq, verbose=verbose)
    nw = sum(1 for x in seq if x.kind == "wait")
    print(f"k3: instrs {len(seq)} pads {pads} waits {nw}")
    t = head + text_of(seq)
    if dump:
        t += f"s_waitcnt vmcnt(0) lgkmcnt(0)\ns_barrier\ns_lshl_b32 s62, s2, 18\ns_add_u32 s62, s62, {64<<20}\ns_add_u32 s64, s60, s62\ns_addc_u32 s65, s61, 0\ns_mov_b32 s66, 262144\ns_mov_b32 s67, {SRD3}\n"
        t += "v_lshlrev_b32 v16, 4, v0\ns_mov_b32 s62, 0\nL3_dump:\nds_read_b128 v[20:23], v16\ns_waitcnt lgkmcnt(0)\nbuffer_store_dwordx4 v[20:23], v16, s[64:67], 0 offen\ns_nop 1\nv_add_u32 v16, 4096, v16\ns_add_u32 s62, s62, 1\ns_cmp_lt_u32 s62, 40\ns_cbranch_scc1 L3_dump\n"
        for r in [f"v[{vAV}:{vAV+3}]"] + [f"a[{x}:{x+3}]" for x in (aFB, aFB+4, aFA, aFA+4, aFA+8, aSS, aSG, aRH, aSEL, aSEL+4)]:
            t += f"buffer_store_dwordx4 {r}, v16, s[64:67], 0 offen\ns_nop 1\nv_add_u32 v16, 4096, v16\n"
    t += f"""
s_waitcnt vmcnt(0)
s_barrier
s_cmp_lg_u32 s{sW}, 3
s_cbranch_scc1 L3_wait
v_mov_b32 v16, 1
v_and_b32 v17, 7, v0
v_lshlrev_b32 v17, 2, v17
s_lshl_b32 s62, s{sS}, 2
v_mov_b32 v18, s62
s_mov_b64 exec, 1
buffer_store_dword v16, v18, s[{rFL}:{rFL+3}], 0 offen sc1
s_mov_b64 exec, 0xff
s_mov_b32 s63, 0
L3_poll:
buffer_load_dword v19, v17, s[{rFL}:{rFL+3}], 0 offen sc1
s_add_u32 s63, s63, 1
s_waitcnt vmcnt(0)
v_cmp_ne_u32 vcc, 1, v19
s_nop 3
s_cbranch_vccz L3_seen
s_cmp_lt_u32 s63, 0x40000
s_cbranch_scc1 L3_poll
L3_seen:
s_mov_b64 exec, -1
s_barrier
s_branch L3_fin
L3_wait:
s_barrier
"""
    body = "v_lshlrev_b32 v16, 4, v0\n"
    for gam in range(3):
        for src in range(8):
            r = aRD + 32 * gam + 4 * src
            body += f"s_mov_b32 s{sOFF}, {gam*196608 + src*24576}\nbuffer_load_dwordx4 a[{r}:{r+3}], v16, s[{rPR}:{rPR+3}], s{sOFF} offen sc1\n"
    for gam in range(3):
        o = 24 + 8 * gam
        for h in range(2):
            body += f"v_mfma_f32_16x16x32_bf16 v[{o+4*h}:{o+4*h+3}], a[{aSEL+4*h}:{aSEL+4*h+3}], a[{aRH+4*gam}:{aRH+4*gam+3}], 0\n"
        for src in range(8):
            r = aRD + 32 * gam + 4 * src
            for h in range(2):
                body += f"v_mfma_f32_16x16x32_bf16 v[{o+4*h}:{o+4*h+3}], a[{aSEL+4*h}:{aSEL+4*h+3}], a[{r}:{r+3}], v[{o+4*h}:{o+4*h+3}]\n"
        for e in range(4): body += f"v_cvt_pk_bf16_f32 v{48+4*gam+e}, v{o+2*e}, v{o+2*e+1}\n"
        body += f"buffer_store_dwordx4 v[{48+4*gam}:{51+4*gam}], v{vO}, s[{rOUT}:{rOUT+3}], 0 offen offset:{384*gam}\n"
    if dump:
        body += "s_waitcnt vmcnt(0)\nv_add_u32 v16, 208896, v16\n"
        for r in ["v[24:27]", "v[28:31]", "v[48:51]"] + [f"a[{aRD+4*k}:{aRD+4*k+3}]" for k in range(8)]:
            body += f"buffer_store_dwordx4 {r}, v16, s[64:67], 0 offen\ns_nop 1\nv_add_u32 v16, 4096, v16\n"
    s3, _ = finish(lines(body), hoist=False)
    t += text_of(s3)
    t += "L3_fin:\n"
    if st: t += "s_waitcnt vmcnt(0)\n" + stamp(3) + stamp_store(2, 4, "k3")
    t += "L3_end:\ns_endpgm\nL3_codeend:\n" + kdesc(n, 512, 256)
    nbytes = sum(8 if (x.kind in ("mfma", "ldsr", "ldsw", "dma", "vld", "vst") or "0x" in x.text or x.op in ("v_fma_f32", "v_cvt_pk_bf16_f32", "v_accvgpr_write_b32", "v_accvgpr_read_b32")) else 5 for x in seq)
    return t, f"; @launch kernel={n} grid=(256,1,1) block=(256,1,1) lds={K3_LDS}\n", 40960
```

```python
import sys, argparse, importlib
from cfg import *
import k0, k1
def build(out, st=False, with_k3=True, **kw):
    if with_k3:
        import k3
        t3, l3, nbytes = k3.gen_k3(st, **kw)
    else:
        nbytes = 16384
        t3 = kbegin("k3_kernel") + (stamp(0)+stamp(1)+stamp(2)+stamp(3)+"s_cmp_ge_u32 s2, 256\ns_cbranch_scc1 L3d\n"+stamp_store(2, 4, "k3d")+"L3d:\n" if st else "") + "s_endpgm\n.fill 4200, 4, 0xbf800000\ns_endpgm\nL3_codeend:\n" + kdesc("k3_kernel", 8, 8)
        l3 = "; @launch kernel=k3_kernel grid=(256,1,1) block=(256,1,1) lds=0\n"
    t0, l0 = k0.gen_k0(st)
    t1, l1 = k1.gen_k1(st, nbytes)
    head = open("sequential_preLN__ssm_conv_h3__glu_gated_swiglu__prompt.s.ref").read().split("; Override launch")[0]
    txt = head + l0 + l1 + l3 + '.amdgcn_target "amdgcn-amd-amdhsa--gfx950"\n.text\n' + t0 + t1 + t3
    open(out, "w").write(txt)
    return txt
if __name__ == "__main__":
    ap = argparse.ArgumentParser()
    ap.add_argument("out"); ap.add_argument("--stamp", action="store_true"); ap.add_argument("--nok3", action="store_true")
    ap.add_argument("-D", action="append", default=[])
    a = ap.parse_args()
    kw = {}
    for d in a.D:
        k, v = d.split("="); kw[k] = eval(v)
    build(a.out, a.stamp, not a.nok3, **kw)
```
